```python
import torch

def _softmax(x, axis=-1):
    return torch.softmax(x, dim=axis)

def _gelu(x):
    return torch.nn.functional.gelu(x, approximate='tanh')

def _silu(x):
    return torch.nn.functional.silu(x)

def _sigmoid(x):
    return torch.sigmoid(x)

def _layernorm(x, axis=-1, eps=1e-05):
    m = x.mean(dim=axis, keepdim=True)
    v = x.var(dim=axis, keepdim=True, unbiased=False)
    return (x - m) / torch.sqrt(v + eps)

def _scatter_add(tgt, idx, src, axis=0):
    return tgt.clone().index_add_(axis, idx, src)

def _segment_sum(src, seg, n):
    out = torch.zeros((n,) + src.shape[1:], dtype=src.dtype)
    return out.index_add_(0, seg, src)

def _pad(x, pw):
    flat = tuple((v for pair in reversed(pw) for v in pair))
    return torch.nn.functional.pad(x, flat)
kernel_name = 'parallel_sum__memory_aug_recurrent_mem_tr__swiglu_ffn__prompt'

def setup_inputs():

    _w = lambda a: (lambda t: t.to(torch.bfloat16) if t.is_floating_point() else t)(torch.as_tensor(a))

    def _A_setup():
        B, S, Dm = (1, 2048, 512)
        H, Dh = (32, 128)
        M, seg = (8, 32)
        seg = min(seg, S)
        S = S // seg * seg
        return {'x': _w((lambda *s: torch.randn(*s, dtype=torch.bfloat16) * 0.05)(B, S, Dm)), 'mem0': _w((lambda *s: torch.randn(*s, dtype=torch.bfloat16) * 1.6)(B, M, Dm)), 'Wq': _w((lambda *s: torch.randn(*s, dtype=torch.bfloat16) * 0.8)(Dm, H, Dh) * Dm ** (-0.5)), 'Wk': _w((lambda *s: torch.randn(*s, dtype=torch.bfloat16) * 0.8)(Dm, H, Dh) * Dm ** (-0.5)), 'Wv': _w((lambda *s: torch.randn(*s, dtype=torch.bfloat16) * 1.6)(Dm, H, Dh) * Dm ** (-0.5)), 'Wo': _w((lambda *s: torch.randn(*s, dtype=torch.bfloat16) * 1.6)(H, Dh, Dm) * (H * Dh) ** (-0.5)), 'seg_len': seg}
    _A_in = _A_setup()

    def _B_setup():
        B, S, D, F = (1, 2048, 512, 1792)
        return {'x': _w((lambda *s: torch.randn(*s, dtype=torch.bfloat16) * 0.05)(B, S, D)), 'w_gate': _w((lambda *s: torch.randn(*s, dtype=torch.bfloat16) * 0.05)(D, F)), 'w_up': _w((lambda *s: torch.randn(*s, dtype=torch.bfloat16) * 0.05)(D, F)), 'w_down': _w((lambda *s: torch.randn(*s, dtype=torch.bfloat16) * 0.05)(F, D))}
    _B_in = _B_setup()
    return {'A_x': _A_in['x'], 'A_mem0': _A_in['mem0'], 'A_Wq': _A_in['Wq'], 'A_Wk': _A_in['Wk'], 'A_Wv': _A_in['Wv'], 'A_Wo': _A_in['Wo'], 'A_seg_len': _A_in['seg_len'], 'B_x': _B_in['x'], 'B_w_gate': _B_in['w_gate'], 'B_w_up': _B_in['w_up'], 'B_w_down': _B_in['w_down']}

def reference(A_x, A_mem0, A_Wq, A_Wk, A_Wv, A_Wo, A_seg_len, B_x, B_w_gate, B_w_up, B_w_down):

    def _A_ref(x, mem0, Wq, Wk, Wv, Wo, seg_len):
        B, S, Dm = x.shape
        H, Dh = (Wq.shape[1], Wq.shape[2])
        M = mem0.shape[1]
        scale = Dh ** (-0.5)
        n_seg = S // seg_len
        L = M + seg_len
        idx = torch.arange(L)
        mask = (idx[:, None] < M) | (idx[:, None] >= idx[None, :])
        mem = mem0
        outs = []
        for s in range(n_seg):
            xs = x[:, s * seg_len:(s + 1) * seg_len, :].clone()
            h = torch.concatenate([mem, xs], axis=1)
            q = torch.einsum('btd,dhe->bhte', h, Wq)
            k = torch.einsum('btd,dhe->bhte', h, Wk)
            v = torch.einsum('btd,dhe->bhte', h, Wv)
            scores = torch.einsum('bhqe,bhke->bhqk', q, k) * scale
            scores = torch.where(mask[None, None], scores, -1000000000.0)
            p = _softmax(scores, axis=-1)
            o = torch.einsum('bhqk,bhke->bhqe', p, v)
            o = torch.einsum('bhte,hed->btd', o, Wo)
            mem = o[:, :M, :].clone()
            outs.append(o[:, M:, :])
        return torch.concatenate(outs, axis=1)

    def _B_ref(x, w_gate, w_up, w_down):
        g = _silu(x @ w_gate)
        u = x @ w_up
        return g * u @ w_down
    x = A_x
    xn = _layernorm(x, axis=-1)
    return x + _A_ref(xn, A_mem0, A_Wq, A_Wk, A_Wv, A_Wo, A_seg_len) + _B_ref(xn, B_w_gate, B_w_up, B_w_down)
```

```python
import re

TRANS = ("v_exp_", "v_log_", "v_rcp_", "v_rsq_", "v_sqrt_", "v_sin_", "v_cos_")
REG_RE = re.compile(r"^(-|\|)?(v|a|s)(\d+)\|?$")
RNG_RE = re.compile(r"^(-|\|)?(v|a|s)\[(\d+):(\d+)\]\|?$")

def regs_of(op):
    op = op.strip()
    if op.startswith("neg(") or op.startswith("abs("):
        op = op[4:-1]
    m = REG_RE.match(op)
    if m:
        return [(m.group(2), int(m.group(3)))]
    m = RNG_RE.match(op)
    if m:
        return [(m.group(2), i) for i in range(int(m.group(3)), int(m.group(4)) + 1)]
    if op == "vcc":
        return [("s", 106), ("s", 107)]
    if op == "vcc_lo":
        return [("s", 106)]
    if op == "vcc_hi":
        return [("s", 107)]
    if op == "exec":
        return [("s", 126), ("s", 127)]
    if op == "m0":
        return [("s", 124)]
    return []

def split_ops(s):
    out, depth, cur = [], 0, ""
    for ch in s:
        if ch in "[(":
            depth += 1
        if ch in "])":
            depth -= 1
        if ch == "," and depth == 0:
            out.append(cur.strip()); cur = ""
        else:
            cur += ch
    if cur.strip():
        out.append(cur.strip())
    return out

class Ins:
    def __init__(self, text):
        self.text = text
        t = text.split(";")[0].strip()
        self.label = None
        self.kind = "other"
        self.dst, self.src = [], []
        self.srcC, self.srcAB = [], []
        self.dpp = False
        self.states = 1
        self.target = None
        self.passes = 0
        self.wide_store = []
        self.sdwa = False
        if t.endswith(":"):
            self.label = t[:-1]; self.kind = "label"; self.states = 0; return
        if t.startswith(".") or not t:
            self.kind = "dir"; self.states = 0; return
        parts = t.split(None, 1)
        mn = parts[0]; self.mn = mn
        rest = parts[1] if len(parts) > 1 else ""
        ops = split_ops(rest)
        mods = ""
        if ops:
            lp = ops[-1].split(None, 1)
            ops[-1] = lp[0]
            if len(lp) > 1: mods = lp[1]
        self.ops = ops; self.mods = mods
        R = [regs_of(o) for o in ops]
        allr = lambda xs: [r for x in xs for r in x]
        if mn.startswith("v_mfma") or mn.startswith("v_smfmac"):
            self.kind = "mfma"
            self.passes = 8 if "32x32" in mn else 4
            self.dst = R[0]
            if mn.startswith("v_smfmac"):
                self.srcC = R[0]; self.srcAB = R[1] + R[2] + R[3]
            else:
                self.srcC = R[3]; self.srcAB = R[1] + R[2]
            self.src = self.srcC + self.srcAB
        elif mn.startswith("v_"):
            self.kind = "valu"
            self.dpp = ("dpp" in mn) or any(k in mods for k in ("quad_perm", "row_", "wave_"))
            self.sdwa = ("sdwa" in mn) or ("op_sel" in mods) or ("dst_sel" in mods)
            if mn.startswith("v_cmp"):
                self.dst = R[0]; self.src = allr(R[1:])
                if mn.startswith("v_cmpx"): self.dst = self.dst + regs_of("exec")
            elif "permlane" in mn and "swap" in mn:
                self.dst = R[0] + R[1]; self.src = R[0] + R[1]
            elif mn.startswith("v_swap"):
                self.dst = R[0] + R[1]; self.src = R[0] + R[1]
            elif re.match(r"v_(add|sub|subrev|addc|subb)_co", mn):
                self.dst = R[0] + R[1]; self.src = allr(R[2:])
            elif mn == "v_nop":
                pass
            else:
                self.dst = R[0]; self.src = allr(R[1:])
                if re.match(r"v_(fmac|mac|dot2c|pk_fmac)", mn) or self.dpp or mn.startswith("v_writelane"):
                    self.src = self.src + R[0]
                if mn.startswith("v_cndmask") and len(ops) == 3:
                    self.src = self.src + regs_of("vcc")
        elif mn.startswith("ds_"):
            self.kind = "ds"
            if mn.startswith("ds_read") or "rtn" in mn or "permute" in mn or "swizzle" in mn:
                self.dst = R[0]; self.src = allr(R[1:])
            else:
                self.src = allr(R)
        elif mn.startswith("global_") or mn.startswith("buffer_"):
            self.kind = "vmem"
            if "load_lds" in mn or " lds" in (" " + mods):
                self.src = allr(R) + regs_of("m0"); self.ldsdma = True
            elif "load" in mn:
                self.dst = R[0]; self.src = allr(R[1:])
            elif "atomic" in mn and "sc0" in mods:
                self.dst = R[0]; self.src = allr(R[1:])
            else:
                self.src = allr(R)
                if "x3" in mn or "x4" in mn:
                    self.wide_store = R[1] if mn.startswith("global_") else R[0]
        elif mn.startswith("s_"):
            self.kind = "salu"
            if mn == "s_nop":
                self.states = int(ops[0], 0) + 1
            elif mn.startswith("s_cbranch") or mn == "s_branch":
                self.kind = "branch"; self.target = ops[0]
            elif mn.startswith("s_cmp") or mn in ("s_waitcnt", "s_barrier", "s_endpgm", "s_sleep", "s_setprio", "s_bitcmp0_b32", "s_bitcmp1_b32"):
                self.src = allr(R)
            else:
                self.dst = R[0] if R else []; self.src = allr(R[1:])
                if "saveexec" in mn: self.dst = self.dst + regs_of("exec")

def need(p, c):
    n = 0
    pd = set(p.dst)
    if p.kind == "valu":
        pv = {r for r in pd if r[0] in "va"}
        ps = {r for r in pd if r[0] == "s"}
        cs = set(c.src)
        if c.kind == "vmem" and ps & cs: n = max(n, 5)
        if c.kind == "valu":
            if c.dpp and pv & cs: n = max(n, 2)
            if ps & cs:
                n = max(n, 4 if ("readlane" in c.mn or "writelane" in c.mn) else 2)
            if ("readlane" in c.mn or "readfirstlane" in c.mn) and pv & cs: n = max(n, 1)
            if "permlane" in c.mn and pv & cs: n = max(n, 2)
            if p.sdwa and pv & (cs | set(c.dst)): n = max(n, 1)
            if ("s", 126) in ps: n = max(n, 5)
        if p.mn.startswith(TRANS) and pv & cs: n = max(n, 1)
        if c.kind == "mfma":
            if pv & cs: n = max(n, 2)
            if ("s", 126) in ps: n = max(n, 4)
    elif p.kind == "salu":
        if ("s", 124) in pd and getattr(c, "ldsdma", False): n = max(n, 1)
    elif p.kind == "vmem":
        if p.wide_store and set(p.wide_store) & set(c.dst): n = max(n, 2)
    elif p.kind == "mfma":
        full = {4: 8, 8: 12}[p.passes]
        part = {4: 6, 8: 10}[p.passes]
        war = {4: 3, 8: 7}[p.passes]
        if c.kind == "mfma":
            if pd & set(c.srcAB): n = max(n, full)
            if pd & set(c.srcC):
                if not (c.srcC == p.dst and c.mn == p.mn): n = max(n, full)
            elif pd & set(c.dst): n = max(n, full)
        elif c.kind in ("valu", "ds", "vmem"):
            if pd & (set(c.src) | set(c.dst)): n = max(n, full)
            if set(p.srcC) & set(c.dst): n = max(n, war if c.kind == "valu" else war)
    return n

class Asm:
    def __init__(self):
        self.ins = []
        self.uid = 0
    def __call__(self, text):
        for line in text.split("\n"):
            line = line.strip()
            if line:
                self.ins.append(Ins(line))
    def label(self, name):
        self.ins.append(Ins(name + ":"))
    def newlabel(self, base="L"):
        self.uid += 1
        return f"{base}_{self.uid}"
    def fix(self):
        W = 13
        def required(hist, c):
            best = 0; dist = 0
            for p in reversed(hist):
                if dist >= W: break
                if p.states:
                    k = need(p, c) - dist
                    if k > best: best = k
                dist += p.states
            return best
        changed = True
        total = 0
        while changed:
            changed = False
            out = []
            for c in self.ins:
                if c.states and c.kind != "dir":
                    hist = []
                    for p in reversed(out[-40:]):
                        if p.kind == "branch" and p.mn == "s_branch": break
                        if getattr(p, "mn", "") == "s_endpgm": break
                        hist.append(p)
                    hist.reverse()
                    k = required(hist, c)
                    if k > 0:
                        out.append(Ins(f"s_nop {k-1} ; hz")); total += k; changed = True
                out.append(c)
            self.ins = out
            idx = {c.label: i for i, c in enumerate(self.ins) if c.label}
            out = []
            for i, b in enumerate(self.ins):
                if b.kind == "branch" and b.target in idx:
                    hist = []
                    for p in reversed(out[-40:]):
                        if p.kind == "branch" and p.mn == "s_branch": break
                        hist.append(p)
                    hist.reverse()
                    hist = hist + [b]
                    j = idx[b.target]; worst = 0; d = 0
                    while d < W and j < len(self.ins):
                        c = self.ins[j]
                        if c.states:
                            worst = max(worst, required(hist, c))
                            hist = hist + [c]; d += c.states
                            if c.kind == "branch" and c.mn == "s_branch": break
                        j += 1
                    if worst > 0:
                        out.append(Ins(f"s_nop {worst-1} ; hzb")); total += worst; changed = True
                out.append(b)
            self.ins = out
        return total
    def text(self):
        o = []
        for c in self.ins:
            o.append(c.text if c.kind in ("label", "dir") else "  " + c.text)
        return "\n".join(o) + "\n"

def vr(b, n=1, k="v"):
    return f"{k}{b}" if n == 1 else f"{k}[{b}:{b+n-1}]"
def ar(b, n=1): return vr(b, n, "a")
def sr(b, n=1): return vr(b, n, "s")
```

```python
import sys, math, struct
sys.path.insert(0, "gen")
from asmlib import *

NAME = "parallel_sum__memory_aug_recurrent_mem_tr__swiglu_ffn__prompt"
FL_REC = 0x0
FL_OT = 0x20000
FL_H = 0x24000
FL_DUMMY = 0x28000
PART = 0x40000
MEMR = 0xC0000
DBGW = 0xD0000
XNF = 0x100000
HF = 0x400000
KF = 0x1000000
VF = 0x2000000
QF = 0x3000000
KMV = 0x4000000
OF = 0x5000000
D_OVF, D_INIT, D_TEAM = 8, 16, 17
sX, sMEM0, sWQ, sWK, sWV, sWO = 16, 18, 20, 22, 24, 26
sWG, sWU, sWD, sOUT, sDBG, sWS = 32, 34, 36, 38, 40, 42
sXCC, sW, sVID, sT, sTMO = 3, 4, 5, 6, 7
CEXP = 128 ** -0.5 * math.log2(math.e)
def fbits(x): return struct.unpack("<I", struct.pack("<f", x))[0]
NG = 6

class VM:
    def __init__(s, A): s.A = A; s.q = []
    def issue(s, text, tag): s.A(text); s.q.append(tag)
    def wait(s, tag):
        idx = max(i for i, t in enumerate(s.q) if t == tag)
        n = len(s.q) - 1 - idx
        assert n <= 63
        s.A(f"s_waitcnt vmcnt({n})"); s.q = s.q[idx + 1:]

def add64(A, dst, base, off):
    A(f"s_add_u32 s{dst}, s{base}, {off}")
    A(f"s_addc_u32 s{dst+1}, s{base+1}, 0")

def spin_tail(A, lbl, sleep=0):
    if sleep: A(f"s_sleep {sleep}")
    A(f"s_sub_u32 s{sTMO}, s{sTMO}, 1")
    A(f"s_cbranch_scc0 {lbl}")
    A(f"s_mov_b32 s{sTMO}, 0")

def wait_word(A, vaddr, sbase, vt, val, off=0, sleep=1, cmp="ge"):
    l = A.newlabel("Lww"); d = A.newlabel("Lwd")
    A.label(l)
    A(f"global_load_dword v{vt}, v{vaddr}, s[{sbase}:{sbase+1}] offset:{off} sc1")
    A("s_waitcnt vmcnt(0)")
    A(f"v_cmp_gt_u32 vcc, {val}, v{vt}")
    A(f"s_cbranch_vccz {d}")
    spin_tail(A, l, sleep)
    A.label(d)

def mark(A, cfg):
    if cfg.get("tl"):
        A("s_memrealtime s[14:15]"); A("s_waitcnt lgkmcnt(0)"); A("s_mov_b32 s101, s14")

def entry(A, cfg):
    A("s_cmp_ge_u32 s2, 256")
    A("s_cbranch_scc1 L_end")
    if cfg.get("tl"): A("s_memrealtime s[100:101]")
    A("s_load_dwordx16 s[16:31], s[0:1], 0")
    A("s_load_dwordx8 s[32:39], s[0:1], 64")
    A("s_load_dwordx4 s[40:43], s[0:1], 96")
    A(f"s_getreg_b32 s{sXCC}, hwreg(HW_REG_XCC_ID)")
    A(f"s_and_b32 s{sXCC}, s{sXCC}, 7")
    A("v_lshrrev_b32 v1, 6, v0")
    A(f"v_readfirstlane_b32 s{sW}, v1")
    A("v_and_b32 v0, 63, v0")
    A(f"s_mov_b32 s{sTMO}, 0x200000")
    A("v_mov_b32 v2, 0")
    A("s_waitcnt lgkmcnt(0)")
    A(f"s_cmp_lg_u32 s{sW}, 0")
    A("s_cbranch_scc1 L_tk")
    A(f"s_lshl_b32 s8, s{sXCC}, 2")
    A("v_mov_b32 v3, s8")
    A("v_mov_b32 v4, 1")
    A("s_mov_b64 exec, 1")
    A(f"global_atomic_add v5, v3, v4, s[{sDBG}:{sDBG+1}] sc0 sc1")
    A("s_waitcnt vmcnt(0)")
    A("v_readfirstlane_b32 s9, v5")
    A(f"s_lshl_b32 s{sVID}, s{sXCC}, 5")
    A(f"s_add_u32 s{sVID}, s{sVID}, s9")
    A("s_cmp_lt_u32 s9, 32")
    A("s_cbranch_scc1 L_tk1")
    A(f"global_atomic_add v5, v2, v4, s[{sDBG}:{sDBG+1}] offset:{D_OVF*4} sc0 sc1")
    A("s_waitcnt vmcnt(0)")
    A("v_readfirstlane_b32 s9, v5")
    A("L_ov:")
    A(f"global_load_dwordx4 v[8:11], v2, s[{sDBG}:{sDBG+1}] sc1")
    A(f"global_load_dwordx4 v[12:15], v2, s[{sDBG}:{sDBG+1}] offset:16 sc1")
    A("s_waitcnt vmcnt(0)")
    A("v_add3_u32 v5, v8, v9, v10")
    A("v_add3_u32 v5, v5, v11, v12")
    A("v_add3_u32 v5, v5, v13, v14")
    A("v_add_u32 v5, v5, v15")
    A("v_cmp_gt_u32 vcc, 256, v5")
    A("s_cbranch_vccz L_ov1")
    spin_tail(A, "L_ov", 2)
    A("L_ov1:")
    A(f"s_mov_b32 s{sVID}, 255")
    for x in range(8):
        A(f"v_readfirstlane_b32 s10, v{8+x}")
        A("s_min_u32 s10, s10, 32")
        A("s_sub_u32 s11, 32, s10")
        A("s_add_u32 s12, s10, s9")
        A(f"s_add_u32 s12, s12, {32*x}")
        A("s_cmp_lt_u32 s9, s11")
        A(f"s_cselect_b32 s{sVID}, s12, s{sVID}")
        A("s_cbranch_scc1 L_tk1")
        A("s_sub_u32 s9, s9, s11")
    A("L_tk1:")
    A(f"v_mov_b32 v5, s{sVID}")
    A("ds_write_b32 v2, v5")
    A("s_waitcnt lgkmcnt(0)")
    A("s_mov_b64 exec, -1")
    A("L_tk:")
    A("s_barrier")
    A("ds_read_b32 v5, v2")
    A("s_waitcnt lgkmcnt(0)")
    A(f"v_readfirstlane_b32 s{sVID}, v5")
    A("s_barrier")
    A(f"s_lshr_b32 s8, s{sVID}, 5")
    A(f"s_and_b32 s{sT}, s{sVID}, 31")
    tgt = {0: "R", 1: "KV", 2: "QG", 3: "QG", 4: "T", 5: "O", 6: "O", 7: "O"}
    for x in range(8):
        r = tgt[x]
        A(f"s_cmp_eq_u32 s8, {x}")
        A(f"s_cbranch_scc1 L_role_{r}" if r in cfg["roles"] else "s_cbranch_scc1 L_end")
    A("s_branch L_end")

def chunk_voff(A, vdst, stride, keytype, t0, t1):
    A(f"v_lshrrev_b32 v{t0}, 4, v0")
    if keytype == 0:
        A(f"s_and_b32 s8, s{sW}, 1")
        A("s_lshl_b32 s8, s8, 2")
        A(f"v_or_b32 v{t1}, s8, v{t0}")
    else:
        A(f"s_lshl_b32 s8, s{sW}, 1")
        A(f"v_and_b32 v{t1}, 1, v{t0}")
        A(f"v_or_b32 v{t1}, s8, v{t1}")
    A(f"v_lshlrev_b32 v{t1}, 1, v{t1}")
    A(f"v_and_b32 v{vdst}, 15, v0")
    A(f"v_xor_b32 v{vdst}, v{vdst}, v{t1}")
    A(f"v_lshlrev_b32 v{vdst}, 4, v{vdst}")
    A(f"s_lshl_b32 s8, s{sW}, 4")
    A(f"v_add_u32 v{t0}, s8, v{t0}")
    A(f"v_mul_u32_u24 v{t0}, {stride}, v{t0}")
    A(f"v_add_u32 v{vdst}, v{vdst}, v{t0}")

def tr_addr(A, vdst, rowexpr, keytype, t0, t1, t2):
    A(f"v_mov_b32 v{t0}, 0")
    for bit, wgt in rowexpr:
        A(f"v_bfe_u32 v{t1}, v0, {bit}, 1")
        A(f"v_mad_u32_u24 v{t0}, v{t1}, {wgt}, v{t0}")
    kb = (0, 1, 4) if keytype == 0 else (0, 4, 5)
    A(f"v_mov_b32 v{t2}, 0")
    for i, b in enumerate(kb):
        A(f"v_bfe_u32 v{t1}, v{t0}, {b}, 1")
        A(f"v_lshl_or_b32 v{t2}, v{t1}, {i}, v{t2}")
    A(f"s_lshl_b32 s8, s{sW}, 1")
    A(f"v_xor_b32 v{t2}, s8, v{t2}")
    A(f"v_lshlrev_b32 v{t2}, 5, v{t2}")
    A(f"v_lshl_add_u32 v{vdst}, v{t0}, 8, v{t2}")
    A(f"v_and_b32 v{t1}, 3, v0")
    A(f"v_lshl_add_u32 v{vdst}, v{t1}, 3, v{vdst}")
    A(f"v_xor_b32 v{vdst+1}, 32, v{vdst}")

def chunk_issue(A, vm, c, slot, sbase, coff, stride, voff, stmp):
    sreg, imm = coff
    for i in range(4):
        off = imm + 4 * i * stride
        if sreg is None:
            add64(A, stmp, sbase, off)
        else:
            A(f"s_add_u32 s{stmp+2}, s{sreg}, {off}")
            add64(A, stmp, sbase, f"s{stmp+2}")
        A(f"s_add_u32 m0, s{stmp+3}, {slot*16384 + i*1024}")
        vm.issue(f"global_load_lds_dwordx4 v{voff}, s[{stmp}:{stmp+1}]", ("c", c))

def weave(A, ms, fs, per=2):
    fs = list(fs)
    for m in ms:
        A(m)
        for _ in range(per):
            if fs: A(fs.pop(0))
    for f in fs: A(f)

XB = 131072
KXB, MEMX, QX, OX = 0, 8192, 16384, 20480
class RR:
    L16, IDX, PST, PLD, MST, WO, XBv, XW, QR, KR, FLG = 1, 2, 3, 4, 5, 6, 7, 8, 9, 10, 11
    T = 12
    ZERO = 0
    SEL, ONE = 16, 20
    MF, AQ, AK, AV, SX, SM, VC, QFR, W8, TQ = 24, 56, 64, 72, 80, 88, 92, 100, 116, 124
    WV = 128
rS = 44
rPST0, rPST1, rPLD, rPRS, rMLD, rMST, rMRS, rK, rV, rKM, rFKV, rFKM = 46, 48, 50, 52, 54, 56, 58, 60, 62, 64, 66, 68
rDUP = 70
rH8K = 72
rTMP = 74
rST = 80
rEXM = 96
rFKP = 98

def wfrag(mat, ks, tau):
    b = (ks * 2 + tau) * 8
    if mat == 0: return ar(b, 8)
    if mat == 1: return ar(128 + b, 8)
    return vr(RR.WV + b, 8)

def SM(acc, a, b):
    return f"v_smfmac_f32_16x16x64_bf16 {vr(acc,4)}, {vr(a,4)}, {b}, v{RR.IDX}"
def MF32(d, a, b, c):
    return f"v_mfma_f32_16x16x32_bf16 {vr(d,4)}, {a}, {b}, {c}"
def MF16(d, a, b, c):
    return f"v_mfma_f32_16x16x16_bf16 {vr(d,4)}, {a}, {b}, {c}"

def r_addr_update(A, w):
    R = RR; t = rTMP
    A(f"s_and_b32 s{t}, s{rS}, 1")
    A(f"s_lshl_b32 s{t}, s{t}, 18")
    A(f"s_lshl_b32 s{t+1}, s{sT}, 8")
    A(f"s_add_u32 s{t+1}, s{t+1}, s{t}")
    A(f"s_add_u32 s{t+1}, s{t+1}, {PART + w*8*8192}")
    add64(A, rPST0, sWS, f"s{t+1}")
    add64(A, rPST1, rPST0, 4 * 8192)
    A(f"s_add_u32 s{t+1}, s{rH8K}, {PART + w*64 + 2048}")
    A(f"s_add_u32 s{t+2}, s{t+1}, s{t}")
    add64(A, rPLD, sWS, f"s{t+2}")
    A(f"s_xor_b32 s{t}, s{t}, 0x40000")
    A(f"s_add_u32 s{t+2}, s{t+1}, s{t}")
    add64(A, rPRS, sWS, f"s{t+2}")
    A(f"s_and_b32 s{t}, s{rS}, 3")
    A(f"s_lshl_b32 s{t}, s{t}, 13")
    A(f"s_add_u32 s{t}, s{t}, {MEMR + w*2048}")
    add64(A, rMLD, sWS, f"s{t}")
    A(f"s_lshr_b32 s{t+1}, s{sT}, 2")
    A(f"s_lshl_b32 s{t+1}, s{t+1}, 10")
    A(f"s_and_b32 s{t+2}, s{sT}, 3")
    A(f"s_lshl_b32 s{t+2}, s{t+2}, 6")
    A(f"s_add_u32 s{t+1}, s{t+1}, s{t+2}")
    A(f"s_add_u32 s{t+1}, s{t+1}, {MEMR + w*256}")
    for d, reg in ((1, rMST), (3, rMRS)):
        A(f"s_add_u32 s{t}, s{rS}, {d}")
        A(f"s_and_b32 s{t}, s{t}, 3")
        A(f"s_lshl_b32 s{t}, s{t}, 13")
        A(f"s_add_u32 s{t}, s{t}, s{t+1}")
        add64(A, reg, sWS, f"s{t}")
    A(f"s_lshl_b32 s{t}, s{rS}, 18")
    A(f"s_add_u32 s{t}, s{t}, s{rH8K}")
    A(f"s_add_u32 s{t+1}, s{t}, {KMV + w*2048}")
    add64(A, rKM, sWS, f"s{t+1}")
    A(f"s_add_u32 s{t+1}, s{t}, {KF + 0x40000 + w*2048}")
    add64(A, rK, sWS, f"s{t+1}")
    add64(A, rV, rK, VF - KF)
    A(f"s_lshr_b32 s{t}, s{t}, 7")
    A(f"s_add_u32 s{t+1}, s{t}, {FL_REC + 32 + 4*w}")
    add64(A, rFKM, sWS, f"s{t+1}")
    A(f"s_add_u32 s{t+1}, s{rS}, 2")
    A(f"s_min_u32 s{t+1}, s{t+1}, 63")
    A(f"s_lshl_b32 s{t+1}, s{t+1}, 11")
    A(f"s_lshl_b32 s{t+2}, s{sT}, 6")
    A(f"s_add_u32 s{t+1}, s{t+1}, s{t+2}")
    A(f"s_add_u32 s{t+1}, s{t+1}, {FL_REC + 4*w}")
    add64(A, rFKV, sWS, f"s{t+1}")

def role_R(A, cfg):
    R = RR
    A("L_role_R:")
    vm = VM(A)
    A(f"s_lshl_b32 s{rH8K}, s{sT}, 13")
    A(f"s_lshl_b32 s{rTMP+3}, s{sW}, 12")
    A(f"s_lshl_b32 s10, s{sT}, 8")
    A(f"s_lshl_b32 s11, s{sT}, 17")
    chunk_voff(A, 30, 8192, 0, 40, 41)
    chunk_voff(A, 31, 1024, 1, 40, 41)
    def issue(c):
        if c < 24:
            m, ks = divmod(c, 8)
            chunk_issue(A, vm, c, c & 7, (sWQ, sWK, sWV)[m], (10, ks * 64 * 8192), 8192, 30, rTMP)
        else:
            cw, ks = divmod(c - 24, 2)
            chunk_issue(A, vm, c, c & 7, sWO, (11, ks * 65536 + cw * 256), 1024, 31, rTMP)
    for c in range(8): issue(c)
    A(f"v_lshlrev_b32 v{R.L16}, 4, v0")
    A(f"v_and_b32 v40, 1, v0")
    A(f"v_mov_b32 v41, 0x4444")
    A(f"v_mov_b32 v42, 0xeeee")
    A(f"v_cmp_eq_u32 s[{rDUP}:{rDUP+1}], 1, v40")
    A(f"v_cndmask_b32 v{R.IDX}, v41, v42, s[{rDUP}:{rDUP+1}]")
    A("v_lshrrev_b32 v40, 4, v0")
    A("v_and_b32 v41, 15, v0")
    A(f"v_lshlrev_b32 v{R.PST}, 13, v40")
    A(f"v_lshl_add_u32 v{R.PST}, v41, 4, v{R.PST}")
    A("v_lshrrev_b32 v42, 2, v0")
    A("v_and_b32 v43, 3, v0")
    A(f"v_lshlrev_b32 v{R.PLD}, 8, v42")
    A(f"v_lshl_add_u32 v{R.PLD}, v43, 4, v{R.PLD}")
    A("v_lshrrev_b32 v44, 5, v0")
    A(f"v_lshlrev_b32 v{R.MST}, 5, v44")
    A(f"v_lshl_add_u32 v{R.MST}, v43, 3, v{R.MST}")
    A("v_and_b32 v44, 1, v40")
    A(f"v_lshl_add_u32 v{R.MST}, v44, 2, v{R.MST}")
    A(f"s_lshl_b32 s8, s{sW}, 15")
    A(f"v_add_u32 v{R.WO}, s8, v{R.L16}")
    A(f"v_add_u32 v{R.XBv}, {XB}, v{R.L16}")
    A(f"s_lshl_b32 s8, s{sW}, 10")
    A(f"s_add_u32 s8, s8, {XB+QX}")
    A(f"v_lshlrev_b32 v{R.XW}, 7, v40")
    A(f"v_lshl_add_u32 v{R.XW}, v41, 2, v{R.XW}")
    A(f"v_add_u32 v{R.XW}, s8, v{R.XW}")
    A("v_lshrrev_b32 v44, 1, v41")
    A(f"v_lshlrev_b32 v{R.QR}, 6, v44")
    A(f"v_lshl_add_u32 v{R.QR}, v40, 4, v{R.QR}")
    A(f"v_add_u32 v{R.QR}, {XB+QX}, v{R.QR}")
    A("v_lshrrev_b32 v44, 2, v41")
    A("v_and_b32 v45, 1, v41")
    A("v_lshl_add_u32 v44, v44, 1, v45")
    A(f"v_lshlrev_b32 v{R.KR}, 6, v44")
    A(f"v_lshl_add_u32 v{R.KR}, v40, 4, v{R.KR}")
    A(f"v_add_u32 v{R.KR}, {XB+QX+512}, v{R.KR}")
    A("v_bfe_u32 v44, v0, 2, 1")
    A("v_lshl_add_u32 v44, v44, 1, v43")
    A("v_bfe_u32 v45, v0, 1, 1")
    A("v_lshl_add_u32 v44, v45, 3, v44")
    A("v_bfe_u32 v45, v0, 3, 1")
    A("v_lshlrev_b32 v45, 4, v45")
    A("v_mov_b32 v46, 0x3f80")
    A("v_lshlrev_b32 v46, v45, v46")
    for j in range(4):
        A(f"v_cmp_eq_u32 vcc, {j}, v44")
        A(f"v_cndmask_b32 v{R.SEL+j}, 0, v46, vcc")
        A(f"v_mov_b32 v{R.ONE+j}, 0x3f803f80")
    tr_addr(A, 32, [(2, 16), (5, 4), (3, 2), (4, 1)], 0, 40, 41, 42)
    A("v_add_u32 v34, 0x10000, v32")
    A("v_add_u32 v35, 0x10000, v33")
    tr_addr(A, 36, [(4, 32), (3, 16), (5, 4), (2, 1)], 1, 40, 41, 42)
    A("v_add_u32 v38, 0x10000, v36")
    A("v_add_u32 v39, 0x10000, v37")
    for j in range(4): A(f"v_mov_b32 v{44+j}, -1")
    A(f"s_lshl_b32 s8, s{sW}, 6")
    A(f"s_add_u32 s8, s8, s{rH8K}")
    A(f"s_add_u32 s8, s8, {PART + 2048}")
    add64(A, 12, sWS, "s8")
    add64(A, 14, 12, 0x40000)
    for b in (12, 14):
        for o in (-2048, 2048):
            vm.issue(f"global_store_dwordx4 v{R.PLD}, v[44:47], s[{b}:{b+1}] offset:{o} sc1", "rst")
    A(f"s_lshr_b32 s8, s{sT}, 2")
    A("s_lshl_b32 s8, s8, 10")
    A(f"s_and_b32 s9, s{sT}, 3")
    A("s_lshl_b32 s9, s9, 6")
    A("s_add_u32 s8, s8, s9")
    A(f"s_lshl_b32 s9, s{sW}, 8")
    A("s_add_u32 s8, s8, s9")
    for sl in range(4):
        A(f"s_add_u32 s9, s8, {MEMR + sl*8192}")
        add64(A, 12, sWS, "s9")
        vm.issue(f"global_store_dword v{R.MST}, v44, s[12:13] sc1", "rst")
    A("v_lshrrev_b32 v40, 4, v0")
    A("v_bfe_u32 v41, v0, 1, 3")
    A("v_and_b32 v42, 1, v0")
    A("v_lshlrev_b32 v43, 10, v41")
    A("v_lshl_add_u32 v43, v40, 3, v43")
    A("v_lshl_add_u32 v43, v42, 2, v43")
    A(f"s_lshl_b32 s8, s{sW}, 8")
    A("v_add_u32 v43, s8, v43")
    for j in range(8):
        vm.issue(f"global_load_dword v{48+j}, v43, s[{sMEM0}:{sMEM0+1}] offset:{j*32}", "m0")
    for c in range(32):
        vm.wait(("c", c))
        A("s_barrier")
        slot = c & 7
        hi = 2 if slot >= 4 else 0
        so = (slot & 3) * 16384
        if c < 24:
            m, ks = divmod(c, 8)
            for tau in range(2):
                for u in range(4):
                    b = (ks * 2 + tau) * 8 + 2 * u
                    dst = ar(b, 2) if m == 0 else ar(128 + b, 2) if m == 1 else vr(R.WV + b, 2)
                    A(f"ds_read_b64_tr_b16 {dst}, v{32+hi+tau} offset:{so + (32*(u&1) + 8*(u>>1))*256}")
            A("s_waitcnt lgkmcnt(0)")
            A("s_barrier")
            issue(c + 8)
            if c == 8:
                A("v_mov_b32 v40, 0")
                A("v_mov_b32 v41, 1")
                A("s_mov_b64 exec, 1")
                vm.issue(f"global_atomic_add v40, v41, s[{sDBG}:{sDBG+1}] offset:{D_TEAM*4} sc1", "team")
                A("s_mov_b64 exec, -1")
        else:
            for tau in range(2):
                for u in range(4):
                    A(f"ds_read_b64_tr_b16 {vr(64+tau*8+2*u,2)}, v{36+hi+tau} offset:{so + (8*(u>>1) + 2*(u&1))*256}")
            A(f"s_lshl_b32 s8, s{sW}, 12")
            A(f"s_add_u32 s8, s8, {slot*16384}")
            A(f"v_add_u32 v40, s8, v{R.L16}")
            A("s_waitcnt lgkmcnt(0)")
            A("s_barrier")
            for q in range(4):
                A(f"ds_write_b128 v40, {vr(64+4*q,4)} offset:{q*1024}")
            A("s_waitcnt lgkmcnt(0)")
    A("v_mov_b32 v40, 0")
    if not cfg.get("noinit"):
        wait_word(A, 40, sDBG, 41, 64, off=D_INIT * 4)
    wait_word(A, 40, sDBG, 41, 128, off=D_TEAM * 4)
    A(f"s_lshl_b32 s8, s{sT}, 6")
    A(f"s_lshl_b32 s9, s{sW}, 2")
    A("s_add_u32 s8, s8, s9")
    A("v_mov_b32 v42, s8")
    wait_word(A, 42, sWS, 41, 1, off=FL_REC)
    wait_word(A, 42, sWS, 41, 1, off=FL_REC + 2048)
    A(f"global_load_dword v41, v40, s[{sDBG}:{sDBG+1}] sc1")
    A(f"s_lshl_b32 s8, s{sW}, 11")
    A(f"s_add_u32 s9, s8, s{rH8K}")
    A(f"s_add_u32 s9, s9, {KF}")
    add64(A, rK, sWS, "s9")
    add64(A, rV, rK, VF - KF)
    A(f"s_add_u32 m0, s8, {XB+KXB}")
    A(f"global_load_lds_dwordx4 v{R.L16}, s[{rK}:{rK+1}] sc1")
    A(f"global_load_lds_dwordx4 v{R.L16}, s[{rK}:{rK+1}] offset:1024 sc1")
    A(f"global_load_dwordx4 {vr(R.VC,4)}, v{R.L16}, s[{rV}:{rV+1}] sc1")
    A(f"global_load_dwordx4 {vr(R.VC+4,4)}, v{R.L16}, s[{rV}:{rV+1}] offset:1024 sc1")
    A("s_mov_b32 s8, 0x05040100")
    A("s_mov_b32 s9, 0x07060302")
    for k2 in range(2):
        b = 48 + 4 * k2
        A(f"v_perm_b32 v{100+4*k2+0}, v{b+1}, v{b+0}, s8")
        A(f"v_perm_b32 v{100+4*k2+1}, v{b+3}, v{b+2}, s8")
        A(f"v_perm_b32 v{100+4*k2+2}, v{b+1}, v{b+0}, s9")
        A(f"v_perm_b32 v{100+4*k2+3}, v{b+3}, v{b+2}, s9")
    for j in range(24): A(f"v_mov_b32 v{R.AQ+j}, 0")
    A(f"s_mov_b32 s{rS}, 0")
    A("v_mov_b32 v0, 0")
    add64(A, rFKP, sWS, FL_DUMMY)
    A(f"s_mov_b32 s{rEXM}, 0x000f000f")
    A(f"s_mov_b32 s{rEXM+1}, 0x000f000f")
    A("s_waitcnt vmcnt(0)")
    mark(A, cfg)
    A("v_readfirstlane_b32 s8, v41")
    A("s_cmp_ge_u32 s8, 32")
    A("s_cselect_b32 s8, 0, 4")
    if cfg.get("forceslow"): A("s_mov_b32 s8, 4")
    A(f"s_add_u32 s8, s8, s{sW}")
    for v in range(8):
        A(f"s_cmp_eq_u32 s8, {v}")
        A(f"s_cbranch_scc1 L_R{v}")
    for v in range(8):
        r_loop(A, cfg, v & 3, v >> 2, f"L_R{v}")

def r_loop(A0, cfg, w, slow, lab):
    class AF:
        def __call__(s, t):
            if cfg.get("nopf") and any(f"s[{x}:" in t for x in (rK, rV, rFKV)) and t.startswith("global"): return
            if cfg.get("nopub") and any(f"s[{x}:" in t for x in (rKM, rFKM, rFKP)) and t.startswith("global"): return
            A0(t)
        label = A0.label
        newlabel = A0.newlabel
    A = AF()
    R = RR
    S = " sc1" if slow else ""
    T = R.T
    stamps = cfg.get("stamps")
    nst = [0]
    def stamp():
        if stamps:
            A(f"s_memtime s[{rST+2*nst[0]}:{rST+2*nst[0]+1}]"); nst[0] += 1
    mf = lambda ks: R.MF + 4 * ks
    own = [2 * w, 2 * w + 1]
    oth = [(2 * w + 2 + i) & 7 for i in range(6)]
    acc = (R.AQ, R.AK, R.AV)
    def sm(m, kss): return [SM(acc[m] + 4 * tau, mf(ks), wfrag(m, ks, tau)) for ks in kss for tau in range(2)]
    def pack_rows(a, d):
        return [f"v_add_f32 v{a}, v{a}, v{a+1}", f"v_add_f32 v{a+4}, v{a+4}, v{a+5}",
                f"v_add_f32 v{a+2}, v{a+2}, v{a+3}", f"v_add_f32 v{a+6}, v{a+6}, v{a+7}",
                f"v_cvt_pk_bf16_f32 v{d}, v{a}, v{a+4}", f"v_cvt_pk_bf16_f32 v{d+1}, v{a+2}, v{a+6}"]
    A(".p2align 6")
    A(f"{lab}:")
    for j in range(8): A(f"v_mov_b32 v{mf(own[0])+j}, v{100+j}")
    r_addr_update(A, w)
    A(f"s_branch {lab}_e")
    A(f"{lab}_p2:")
    A(f"global_load_dwordx4 {vr(mf(own[0]),4)}, v{R.L16}, s[{rMLD}:{rMLD+1}] sc1")
    A(f"global_load_dwordx4 {vr(mf(own[1]),4)}, v{R.L16}, s[{rMLD}:{rMLD+1}] offset:1024 sc1")
    A("s_waitcnt vmcnt(0)")
    b = mf(own[0])
    A(f"v_max3_u32 v{T}, v{b}, v{b+1}, v{b+2}")
    A(f"v_max3_u32 v{T+1}, v{b+3}, v{b+4}, v{b+5}")
    A(f"v_max3_u32 v{T}, v{T}, v{b+6}, v{b+7}")
    A(f"v_max_u32 v{T}, v{T}, v{T+1}")
    A(f"v_cmp_eq_u32 vcc, -1, v{T}")
    A(f"s_cbranch_vccz {lab}_e")
    spin_tail(A, f"{lab}_p2")
    A(f"{lab}_e:")
    stamp()
    for ks in own:
        A(f"ds_write_b128 v{R.XBv}, {vr(mf(ks),4)} offset:{MEMX + ks*1024}")
    fill = [f"v_mov_b32 v{R.TQ+j}, -1" for j in range(4)]
    fill += [f"global_store_dwordx4 v{R.PLD}, {vr(R.TQ,4)}, s[{rPRS}:{rPRS+1}] offset:-2048{S}",
             f"global_store_dwordx4 v{R.PLD}, {vr(R.TQ,4)}, s[{rPRS}:{rPRS+1}] offset:2048{S}",
             f"global_store_dword v{R.MST}, v{R.TQ}, s[{rMRS}:{rMRS+1}]{S}",
             f"global_store_dword v{R.ZERO}, v{R.TQ}, s[{rFKP}:{rFKP+1}] sc1"]
    weave(A, sm(0, own) + sm(1, own)[:2], fill)
    A("s_waitcnt lgkmcnt(0)")
    A("s_barrier")
    for ks in oth:
        A(f"ds_read_b128 {vr(mf(ks),4)}, v{R.XBv} offset:{MEMX + ks*1024}")
    A(f"ds_read_b128 {vr(R.W8,4)}, v{R.XBv} offset:{KXB}")
    A(f"ds_read_b128 {vr(R.W8+4,4)}, v{R.XBv} offset:{KXB+1024}")
    for m in sm(1, own)[2:] + sm(2, own): A(m)
    for i, ks in enumerate(oth):
        A(f"s_waitcnt lgkmcnt({7-i})")
        for m in sm(0, [ks]): A(m)
    stamp()
    kr = sm(1, oth)
    vr_ = sm(2, oth)
    for m in kr[:4]: A(m)
    weave(A, kr[4:8], pack_rows(R.AQ, T) + [f"ds_write2_b32 v{R.XW}, v{T}, v{T+1} offset0:0 offset1:16"])
    A(kr[8])
    A("s_waitcnt lgkmcnt(0)")
    A("s_barrier")
    for j in range(4):
        A(f"ds_read_b128 {vr(R.QFR+4*j,4)}, v{R.QR} offset:{j*1024}")
    A(f"ds_read_b128 {vr(R.AQ,4)}, v{R.XBv} offset:{KXB+2048}")
    A(f"ds_read_b128 {vr(R.AQ+4,4)}, v{R.XBv} offset:{KXB+3072}")
    for m in kr[9:]: A(m)
    stamp()
    for m in vr_[:4]: A(m)
    for f in pack_rows(R.AK, T): A(f)
    A(f"ds_write2_b32 v{R.XW}, v{T}, v{T+1} offset0:128 offset1:144")
    A("s_waitcnt lgkmcnt(1)")
    for kt in range(2): A(MF32(R.SX + 4 * kt, vr(R.W8 + 4 * kt, 4), vr(R.QFR, 4), "0"))
    A(f"ds_read_b128 {vr(R.W8,4)}, v{R.XBv} offset:{KXB+4096}")
    A(f"ds_read_b128 {vr(R.W8+4,4)}, v{R.XBv} offset:{KXB+5120}")
    for kt in range(2): A(MF32(R.SX + 4 * kt, vr(R.AQ + 4 * kt, 4), vr(R.QFR + 4, 4), vr(R.SX + 4 * kt, 4)))
    A(f"ds_read_b128 {vr(R.AQ,4)}, v{R.XBv} offset:{KXB+6144}")
    A(f"ds_read_b128 {vr(R.AQ+4,4)}, v{R.XBv} offset:{KXB+7168}")
    for m in vr_[4:8]: A(m)
    A("s_waitcnt lgkmcnt(0)")
    A("s_barrier")
    for kt in range(2): A(MF32(R.SX + 4 * kt, vr(R.W8 + 4 * kt, 4), vr(R.QFR + 8, 4), vr(R.SX + 4 * kt, 4)))
    for kt in range(2): A(MF32(R.SX + 4 * kt, vr(R.AQ + 4 * kt, 4), vr(R.QFR + 12, 4), vr(R.SX + 4 * kt, 4)))
    kf = [R.W8, R.W8 + 4, R.AQ, R.AQ + 4]
    for j in range(4):
        A(f"ds_read_b128 {vr(kf[j],4)}, v{R.KR} offset:{j*1024}")
    A(f"s_mov_b32 m0, {XB + KXB + w*2048}")
    weave(A, vr_[8:12], [f"global_load_lds_dwordx4 v{R.L16}, s[{rK}:{rK+1}] sc1",
                         f"global_load_lds_dwordx4 v{R.L16}, s[{rK}:{rK+1}] offset:1024 sc1",
                         f"global_load_dword v{R.FLG}, v{R.ZERO}, s[{rFKV}:{rFKV+1}] sc1"], 1)
    stamp()
    for j in range(4):
        A(f"s_waitcnt lgkmcnt({3-j})")
        A(MF32(R.SM, vr(kf[j], 4), vr(R.QFR + 4 * j, 4), "0" if j == 0 else vr(R.SM, 4)))
    A(f"global_store_dwordx4 v{R.L16}, {vr(kf[w],4)}, s[{rKM}:{rKM+1}] sc1")
    X = R.SX
    A(f"v_max3_f32 v{T}, v{X}, v{X+1}, v{X+2}")
    A(f"v_max3_f32 v{T+1}, v{X+3}, v{X+4}, v{X+5}")
    A(f"v_max3_f32 v{T}, v{T}, v{X+6}, v{X+7}")
    A(f"v_max_f32 v{T}, v{T}, v{T+1}")
    V = R.AV
    A(f"v_add_f32 v{V}, v{V}, v{V+1}")
    A(f"v_add_f32 v{V+2}, v{V+2}, v{V+3}")
    A(f"v_add_f32 v{V+4}, v{V+4}, v{V+5}")
    A(f"v_add_f32 v{V+6}, v{V+6}, v{V+7}")
    A(f"v_cvt_pk_bf16_f32 v{V}, v{V}, v{V+2}")
    A(f"v_cvt_pk_bf16_f32 v{V+1}, v{V+4}, v{V+6}")
    A(f"global_store_dwordx2 v{R.L16}, {vr(V,2)}, s[{rKM}:{rKM+1}] offset:1024 sc1")
    A(f"s_cmp_eq_u32 s{rS}, {cfg.get('last',63)}")
    A(f"s_cbranch_scc1 {lab}_fin")
    A(f"v_max3_f32 v{T}, v{T}, v{R.SM}, v{R.SM+1}")
    A(f"v_mov_b32 v{T+1}, v{T}")
    A(f"v_permlane32_swap_b32 v{T}, v{T+1}")
    A(f"v_max_f32 v{T}, v{T}, v{T+1}")
    A(f"v_mov_b32 v{T+1}, v{T}")
    A(f"v_permlane16_swap_b32 v{T}, v{T+1}")
    A(f"v_max_f32 v{T}, v{T}, v{T+1}")
    A(f"v_mul_f32 v{T}, {hex(fbits(-CEXP))}, v{T}")
    A(f"s_mov_b32 s{rTMP}, {hex(fbits(CEXP))}")
    ev = [R.SM, R.SM + 1] + [X + j for j in range(8)]
    for r in ev: A(f"v_fma_f32 v{r}, v{r}, s{rTMP}, v{T}")
    for r in ev: A(f"v_exp_f32 v{r}, v{r}")
    def wo_read(i, dst):
        tile, ks = divmod(i, 2)
        return [f"ds_read_b128 {vr(dst+4*hh,4)}, v{R.WO} offset:{ks*16384 + tile*2048 + hh*1024}" for hh in range(2)]
    A(f"v_cvt_pk_bf16_f32 v{T+2}, v{R.SM}, v{R.SM+1}")
    for j in range(4): A(f"v_cvt_pk_bf16_f32 v{X+j}, v{X+2*j}, v{X+2*j+1}")
    A(f"v_cndmask_b32 v{R.TQ}, v{T+2}, 0, s[{rDUP}:{rDUP+1}]")
    A(f"v_cndmask_b32 v{R.TQ+1}, 0, v{T+2}, s[{rDUP}:{rDUP+1}]")
    O = R.AK
    A(MF32(X + 4, vr(R.ONE, 4), vr(X, 4), "0"))
    A(MF16(V + 4, vr(R.ONE, 2), vr(R.TQ, 2), "0"))
    A(MF32(O, vr(R.VC, 4), vr(X, 4), "0"))
    A(MF32(O + 4, vr(R.VC + 4, 4), vr(X, 4), "0"))
    A(MF16(R.SM, vr(V, 2), vr(R.TQ, 2), "0"))
    A(f"global_load_dwordx4 {vr(R.VC,4)}, v{R.L16}, s[{rV}:{rV+1}] sc1")
    A(f"global_load_dwordx4 {vr(R.VC+4,4)}, v{R.L16}, s[{rV}:{rV+1}] offset:1024 sc1")
    for i in range(4):
        for f in wo_read(i, R.MF + 8 * i): A(f)
    A(f"v_add_f32 v{T}, v{X+4}, v{V+4}")
    A(f"v_rcp_f32 v{T}, v{T}")
    for j in range(4): A(f"v_cndmask_b32 v{O+j}, v{O+j}, v{O+4+j}, s[{rDUP}:{rDUP+1}]")
    for j in range(4): A(f"v_add_f32 v{O+j}, v{O+j}, v{R.SM+j}")
    for j in range(4): A(f"v_mul_f32 v{O+j}, v{O+j}, v{T}")
    A(f"v_cvt_pk_bf16_f32 v{T+2}, v{O}, v{O+1}")
    A(f"v_cvt_pk_bf16_f32 v{T+3}, v{O+2}, v{O+3}")
    A(f"ds_write_b64 v{R.XBv}, {vr(T+2,2)} offset:{OX + (w>>1)*1024 + (w&1)*8}")
    stamp()
    wacc = [R.QFR, R.QFR + 4, R.QFR + 8, R.QFR + 12, R.W8, R.W8 + 4, R.AQ, R.AQ + 4]
    for a in wacc:
        A(f"v_mov_b64 {vr(a,2)}, 0")
        A(f"v_mov_b64 {vr(a+2,2)}, 0")
    A("s_waitcnt lgkmcnt(0)")
    A("s_barrier")
    OFR = R.SX
    A(f"ds_read_b128 {vr(OFR,4)}, v{R.XBv} offset:{OX}")
    A(f"ds_read_b128 {vr(OFR+4,4)}, v{R.XBv} offset:{OX+1024}")
    win = [R.MF, R.MF + 8, R.MF + 16, R.MF + 24, R.AK, R.AV]
    for i in (4, 5):
        for f in wo_read(i, win[i]): A(f)
    q = ["o", "o", 4, 4, 5, 5]
    def lw(tag):
        nonlocal q
        if tag in q:
            idx = max(i for i, t in enumerate(q) if t == tag)
            A(f"s_waitcnt lgkmcnt({min(15, len(q)-1-idx)})"); q = q[idx + 1:]
    lw("o")
    stamp()
    def out_pack(a):
        f = []
        for t in range(4):
            c = wacc[4 * a + t]
            f += [f"v_add_f32 v{c}, v{c}, v{c+1}", f"v_add_f32 v{c+2}, v{c+2}, v{c+3}"]
        dst = R.TQ if a == 0 else T
        for t in range(4):
            c = wacc[4 * a + t]
            f.append(f"v_cvt_pk_bf16_f32 v{dst+t}, v{c}, v{c+2}")
        for t in range(4): f.append(f"v_min_u32 v{dst+t}, -2, v{dst+t}")
        base = rPST0 if a == 0 else rPST1
        f.append(f"global_store_dwordx4 v{R.PST}, {vr(dst,4)}, s[{base}:{base+1}]{S}")
        return f
    pend = []
    for i in range(16):
        tile, ks = divmod(i, 2)
        lw(i)
        A(SM(wacc[tile], OFR + 4 * ks, vr(win[i % 6], 8)))
        if i + 6 < 16:
            for f in wo_read(i + 6, win[i % 6]): A(f)
            q += [i + 6, i + 6]
        if i == 10: pend = out_pack(0)
        for _ in range(3):
            if pend: A(pend.pop(0))
    for f in pend: A(f)
    for f in out_pack(1): A(f)
    stamp()
    PA = R.MF; D = R.SM
    A(f"{lab}_p1:")
    A(f"global_load_dwordx4 {vr(PA,4)}, v{R.PLD}, s[{rPLD}:{rPLD+1}] offset:-2048 sc1")
    A(f"global_load_dwordx4 {vr(PA+4,4)}, v{R.PLD}, s[{rPLD}:{rPLD+1}] offset:2048 sc1")
    A("s_waitcnt vmcnt(0)")
    A(MF32(D, vr(R.SEL, 4), vr(PA, 4), "0"))
    A(MF32(D, vr(R.SEL, 4), vr(PA + 4, 4), vr(D, 4)))
    A(f"v_max3_u32 v{T}, v{PA}, v{PA+1}, v{PA+2}")
    A(f"v_max3_u32 v{T+1}, v{PA+3}, v{PA+4}, v{PA+5}")
    A(f"v_max3_u32 v{T}, v{T}, v{PA+6}, v{PA+7}")
    A(f"v_max_u32 v{T}, v{T}, v{T+1}")
    A(f"v_cmp_eq_u32 vcc, -1, v{T}")
    A(f"s_cbranch_vccz {lab}_p1d")
    spin_tail(A, f"{lab}_p1")
    A(f"{lab}_p1d:")
    for rot in (4, 8):
        for j in range(2):
            A(f"v_add_f32_dpp v{D+j}, v{D+j}, v{D+j} row_ror:{rot} row_mask:0xf bank_mask:0xf")
    A(f"v_cvt_pk_bf16_f32 v{T}, v{D}, v{D+1}")
    A(f"v_min_u32 v{T}, -2, v{T}")
    A(f"s_mov_b64 exec, s[{rEXM}:{rEXM+1}]")
    A(f"global_store_dword v{R.MST}, v{T}, s[{rMST}:{rMST+1}]{S}")
    A("s_mov_b64 exec, -1")
    A(f"s_mov_b64 s[{rFKP}:{rFKP+1}], s[{rFKM}:{rFKM+1}]")
    stamp()
    if stamps:
        skip = A.newlabel("Lsk")
        A(f"s_cmp_lg_u32 s{rS}, {stamps}")
        A(f"s_cbranch_scc1 {skip}")
        A("s_waitcnt lgkmcnt(0)")
        A(f"s_lshl_b32 s{rTMP}, s{sT}, 8")
        A(f"s_add_u32 s{rTMP}, s{rTMP}, {DBGW + w*64}")
        A(f"v_mov_b32 v{T+2}, s{rTMP}")
        for i in range(nst[0]):
            A(f"v_mov_b32 v{T+3}, s{rST+2*i}")
            A(f"global_store_dword v{T+2}, v{T+3}, s[{sWS}:{sWS+1}] offset:{4*i}")
        A.label(skip)
    A(f"v_readfirstlane_b32 s{rTMP}, v{R.FLG}")
    A(f"s_cmp_lg_u32 s{rTMP}, 0")
    if cfg.get("nopf"): A("s_cmp_eq_u32 0, 0")
    A(f"s_cbranch_scc1 {lab}_fok")
    A(f"v_mov_b32 v{T+2}, 0")
    wait_word(A, T + 2, rFKV, T + 3, 1, sleep=0)
    A(f"{lab}_fok:")
    for j in range(12): A(f"v_mov_b64 {vr(R.AQ+2*j,2)}, 0")
    A(f"s_add_u32 s{rS}, s{rS}, 1")
    r_addr_update(A, w)
    A(f"s_branch {lab}_p2")
    A(f"{lab}_fin:")
    A("s_waitcnt vmcnt(0)")
    A("s_mov_b64 exec, 1")
    A(f"v_mov_b32 v{T+1}, 1")
    A(f"global_store_dword v{R.L16}, v{T+1}, s[{rFKM}:{rFKM+1}] sc1")
    if stamps:
        A(f"s_memtime s[{rST}:{rST+1}]")
        A("s_waitcnt lgkmcnt(0)")
        A(f"s_lshl_b32 s{rTMP}, s{sT}, 8")
        A(f"s_add_u32 s{rTMP}, s{rTMP}, {DBGW + w*64}")
        A(f"v_mov_b32 v{T+2}, s{rTMP}")
        A(f"v_mov_b32 v{T+3}, s{rST}")
        A(f"global_store_dword v{T+2}, v{T+3}, s[{sWS}:{sWS+1}] offset:60")
    A("s_endpgm")

pB0, pB1 = 44, 46
pSEG, pSTEP = 48, 49
pXN, pO0, pO1, pFL = 50, 52, 54, 56
pTMP = 60
def p_body(A, cfg, kind, stride, lab):
    vm = VM(A)
    L16 = 1
    A(f"s_lshl_b32 s{pTMP+3}, s{sW}, 12")
    chunk_voff(A, 30, stride, 0, 40, 41)
    def issue(c):
        hf, ks = divmod(c, 8)
        chunk_issue(A, vm, c, c & 7, (pB0, pB1)[hf], (None, ks * 64 * stride), stride, 30, pTMP)
    for c in range(8): issue(c)
    A(f"v_lshlrev_b32 v{L16}, 4, v0")
    tr_addr(A, 32, [(4, 16), (5, 32), (2, 1), (3, 2)], 0, 40, 41, 42)
    A("v_add_u32 v34, 0x10000, v32")
    A("v_add_u32 v35, 0x10000, v33")
    wf = lambda hf, kk, tau: ((hf * 16 + kk) * 2 + tau) * 4
    for c in range(16):
        vm.wait(("c", c))
        A("s_barrier")
        slot = c & 7; hi = 2 if slot >= 4 else 0; so = (slot & 3) * 16384
        hf, ks = divmod(c, 8)
        for k1 in range(2):
            for tau in range(2):
                for u in range(2):
                    A(f"ds_read_b64_tr_b16 {ar(wf(hf, 2*ks+k1, tau) + 2*u, 2)}, v{32+hi+tau} offset:{so + (8*k1 + 4*u)*256}")
        A("s_waitcnt lgkmcnt(0)")
        A("s_barrier")
        if c + 8 < 16: issue(c + 8)
    A("v_mov_b32 v2, 0")
    A("v_mov_b32 v3, 1")
    if not cfg.get("noinit"):
        wait_word(A, 2, sDBG, 4, 64, off=D_INIT * 4)
    def fetch(segreg, bufreg):
        A(f"s_min_u32 s{pTMP}, s{segreg}, 63")
        A(f"s_lshl_b32 s{pTMP}, s{pTMP}, 15")
        A(f"s_lshl_b32 s{pTMP+1}, s{sW}, 13")
        A(f"s_add_u32 s{pTMP}, s{pTMP}, s{pTMP+1}")
        A(f"s_add_u32 s{pTMP}, s{pTMP}, {XNF}")
        add64(A, pXN, sWS, f"s{pTMP}")
        A(f"s_add_u32 m0, s{pTMP+1}, s{bufreg}")
        for i in range(4):
            A(f"global_load_lds_dwordx4 v{L16}, s[{pXN}:{pXN+1}] offset:{i*1024} sc1")
        add64(A, pXN, pXN, 4096)
        A("s_add_u32 m0, m0, 4096")
        for i in range(4):
            A(f"global_load_lds_dwordx4 v{L16}, s[{pXN}:{pXN+1}] offset:{i*1024} sc1")
    def flags():
        if kind == "Q":
            A(f"global_store_dword v2, v3, s[{pFL}:{pFL+1}] offset:16 sc1")
            A(f"global_store_dword v2, v3, s[{pFL}:{pFL+1}] offset:80 sc1")
        else:
            A(f"global_store_dword v2, v3, s[{pFL}:{pFL+1}] sc1")
    nfl = 2 if kind == "Q" else 1
    nst = 2 if kind == "GU" else 4
    pBUF, pNX = 58, 59
    A(f"s_mov_b32 s{pBUF}, 0")
    add64(A, pFL, sWS, FL_DUMMY)
    fetch(pSEG, pBUF)
    A(f"v_mov_b32 v6, v{L16}")
    A("s_waitcnt vmcnt(0)")
    mark(A, cfg)
    A(f"{lab}_loop:")
    A(f"s_waitcnt vmcnt({nfl+nst})")
    A("s_barrier")
    A(f"s_add_u32 s{pNX}, s{pSEG}, s{pSTEP}")
    A(f"s_xor_b32 s{pBUF}, s{pBUF}, 0x8000")
    fetch(pNX, pBUF)
    ACC = 64
    XF = 16
    acc = lambda hf, tau, kt: ACC + ((hf * 2 + tau) * 2 + kt) * 4
    def rd(kk):
        for kt in range(2):
            A(f"ds_read_b128 {vr(XF + (kk & 3)*8 + kt*4, 4)}, v6 offset:{(kk*2+kt)*1024}")
    for kk in range(3): rd(kk)
    for kk in range(16):
        if kk + 3 < 16: rd(kk + 3)
        A(f"s_waitcnt lgkmcnt({2*min(3, 15-kk)})")
        if kk == 8:
            A("s_waitcnt vmcnt(8)")
            flags()
        for hf in range(2):
            for tau in range(2):
                for kt in range(2):
                    x = vr(XF + (kk & 3) * 8 + kt * 4, 4); wv = ar(wf(hf, kk, tau), 4)
                    d = acc(hf, tau, kt); c = "0" if kk == 0 else vr(d, 4)
                    if kind == "KV" and hf == 1: A(MF32(d, x, wv, c))
                    else: A(MF32(d, wv, x, c))
    A("v_xor_b32 v6, 0x8000, v6")
    OT = 100
    if kind in ("KV", "Q"):
        A(f"s_lshl_b32 s{pTMP}, s{pSEG}, 18")
        A(f"s_lshl_b32 s{pTMP+1}, s10, {13 if kind == 'KV' else 14}")
        A(f"s_add_u32 s{pTMP}, s{pTMP}, s{pTMP+1}")
        A(f"s_lshr_b32 s{pTMP+2}, s{pTMP}, 7")
        A(f"s_lshl_b32 s{pTMP+1}, s{sW}, 2")
        A(f"s_add_u32 s{pTMP+2}, s{pTMP+2}, s{pTMP+1}")
        A(f"s_lshl_b32 s{pTMP+1}, s{sW}, 11")
        A(f"s_add_u32 s{pTMP}, s{pTMP}, s{pTMP+1}")
        A(f"s_add_u32 s{pTMP}, s{pTMP}, {KF if kind == 'KV' else QF}")
        add64(A, pO0, sWS, f"s{pTMP}")
        add64(A, pO1, pO0, VF - KF if kind == "KV" else 8192)
        add64(A, pFL, sWS, f"s{pTMP+2}")
        for hf in range(2):
            for a in range(2):
                o = OT + (hf * 2 + a) * 4
                if kind == "KV" and hf == 1:
                    for kt in range(2):
                        for p in range(2):
                            A(f"v_cvt_pk_bf16_f32 v{o+2*kt+p}, v{acc(1,a,kt)+2*p}, v{acc(1,a,kt)+2*p+1}")
                else:
                    for i in range(4):
                        A(f"v_cvt_pk_bf16_f32 v{o+i}, v{acc(hf,0,a)+i}, v{acc(hf,1,a)+i}")
                b = (pO0, pO1)[hf]
                A(f"global_store_dwordx4 v{L16}, {vr(o,4)}, s[{b}:{b+1}] offset:{a*1024} sc1")
    else:
        A(f"s_mul_i32 s{pTMP}, s{pSEG}, {2*56*1024}")
        A(f"s_lshl_b32 s{pTMP+1}, s10, 12")
        A(f"s_add_u32 s{pTMP}, s{pTMP}, s{pTMP+1}")
        A(f"s_lshl_b32 s{pTMP+1}, s{sW}, 10")
        A(f"s_add_u32 s{pTMP}, s{pTMP}, s{pTMP+1}")
        A(f"s_add_u32 s{pTMP}, s{pTMP}, {HF}")
        add64(A, pO0, sWS, f"s{pTMP}")
        add64(A, pO1, pO0, 56 * 1024)
        A(f"s_lshl_b32 s{pTMP}, s{pSEG}, 8")
        A(f"s_lshl_b32 s{pTMP+1}, s10, 4")
        A(f"s_add_u32 s{pTMP}, s{pTMP}, s{pTMP+1}")
        A(f"s_lshl_b32 s{pTMP+1}, s{sW}, 2")
        A(f"s_add_u32 s{pTMP}, s{pTMP}, s{pTMP+1}")
        A(f"s_add_u32 s{pTMP}, s{pTMP}, {FL_H}")
        add64(A, pFL, sWS, f"s{pTMP}")
        A(f"s_mov_b32 s{pTMP}, {hex(fbits(-math.log2(math.e)))}")
        A(f"s_mov_b32 s{pTMP+1}, 0xffff0000")
        for kt in range(2):
            o = OT + kt * 4
            for tau in range(2):
                g = acc(0, tau, kt); u = acc(1, tau, kt); t = 108
                for i in range(4): A(f"v_cvt_pk_bf16_f32 v{t+i}, v{g+i}, v{u+i}")
                for i in range(4): A(f"v_lshlrev_b32 v{g+i}, 16, v{t+i}")
                for i in range(4): A(f"v_and_b32 v{u+i}, s{pTMP+1}, v{t+i}")
                for i in range(4): A(f"v_mul_f32 v{t+i}, s{pTMP}, v{g+i}")
                for i in range(4): A(f"v_exp_f32 v{t+i}, v{t+i}")
                for i in range(4): A(f"v_add_f32 v{t+i}, 1.0, v{t+i}")
                for i in range(4): A(f"v_rcp_f32 v{t+i}, v{t+i}")
                for i in range(4): A(f"v_mul_f32 v{g+i}, v{g+i}, v{t+i}")
                for p in range(2): A(f"v_cvt_pk_bf16_f32 v{t+p}, v{g+2*p}, v{g+2*p+1}")
                for p in range(2):
                    A(f"v_lshlrev_b32 v{g+2*p}, 16, v{t+p}")
                    A(f"v_and_b32 v{g+2*p+1}, s{pTMP+1}, v{t+p}")
                for i in range(4): A(f"v_mul_f32 v{g+i}, v{g+i}, v{u+i}")
                for p in range(2): A(f"v_cvt_pk_bf16_f32 v{o+2*tau+p}, v{g+2*p}, v{g+2*p+1}")
            b = (pO0, pO1)[kt]
            A(f"global_store_dwordx4 v{L16}, {vr(o,4)}, s[{b}:{b+1}] sc1")
    A(f"s_mov_b32 s{pSEG}, s{pNX}")
    A(f"s_cmp_lt_u32 s{pSEG}, 64")
    A(f"s_cbranch_scc1 {lab}_loop")
    A("s_waitcnt vmcnt(0)")
    flags()
    A("s_endpgm")

def role_KV(A, cfg):
    A("L_role_KV:")
    A(f"s_mov_b32 s10, s{sT}")
    A(f"s_lshl_b32 s8, s{sT}, 8")
    add64(A, pB0, sWK, "s8")
    add64(A, pB1, sWV, "s8")
    A(f"s_mov_b32 s{pSEG}, 0")
    A(f"s_mov_b32 s{pSTEP}, 1")
    p_body(A, cfg, "KV", 8192, "L_KV")

def role_QG(A, cfg):
    A("L_role_QG:")
    A(f"s_bfe_u32 s{pSEG}, s{sVID}, 0x10005")
    A(f"s_mov_b32 s{pSTEP}, 2")
    A(f"s_cmp_ge_u32 s{sT}, 30")
    A("s_cbranch_scc1 L_end")
    A(f"s_cmp_ge_u32 s{sT}, 16")
    A("s_cbranch_scc1 L_role_GU")
    A(f"s_mov_b32 s10, s{sT}")
    A(f"s_lshl_b32 s8, s{sT}, 9")
    add64(A, pB0, sWQ, "s8")
    add64(A, pB1, pB0, 256)
    p_body(A, cfg, "Q", 8192, "L_Q")
    A("L_role_GU:")
    A(f"s_sub_u32 s10, s{sT}, 16")
    A("s_lshl_b32 s8, s10, 8")
    add64(A, pB0, sWG, "s8")
    add64(A, pB1, sWU, "s8")
    p_body(A, cfg, "GU", 3584, "L_GU")

def role_T(A, cfg):
    A("L_role_T:")
    tS, tQT, tREC, tQ, tK, tV, tKM, tO, tFL, tFP = 44, 45, 46, 48, 50, 52, 54, 56, 58, 60
    tTMP = 62; tM = 70
    L16 = 1
    NT = cfg.get("tpar", 2)
    A(f"v_lshlrev_b32 v{L16}, 4, v0")
    A("v_mov_b32 v2, 0")
    A("v_mov_b32 v3, 1")
    A(f"s_and_b32 s{tQT}, s{sW}, 1")
    A(f"s_lshr_b32 s{tS}, s{sW}, 1")
    A("v_and_b32 v4, 7, v0")
    A("v_lshlrev_b32 v4, 2, v4")
    A("v_and_b32 v5, 3, v0")
    A("v_lshlrev_b32 v5, 2, v5")
    A("v_lshrrev_b32 v6, 4, v0")
    A("v_lshlrev_b32 v6, 2, v6")
    A("v_and_b32 v7, 15, v0")
    A(f"s_lshl_b32 s8, s{tQT}, 4")
    A("v_add_u32 v7, s8, v7")
    A("v_sub_u32 v7, v7, v6")
    for kt in range(2):
        for t in range(4):
            m = tM + 2 * (kt * 4 + t)
            A(f"v_cmp_le_i32 s[{m}:{m+1}], {16*kt+t}, v7")
    for j in range(4): A(f"v_mov_b32 v{8+j}, 0x3f803f80")
    A(f"v_mov_b32 v12, {hex(fbits(-1e9 * math.sqrt(128.0)))}")
    if not cfg.get("noinit"):
        wait_word(A, 2, sDBG, 6, 64, off=D_INIT * 4)
    add64(A, tFP, sWS, FL_DUMMY)
    Qr, Kr, Vr, KMr, VMr, X, OA, PM, T = 16, 32, 64, 96, 112, 120, 136, 168, 172
    SMr = 128; LX = 132; LM = 176
    mark(A, cfg)
    A("L_T_loop:")
    A(f"s_lshl_b32 s{tTMP}, s{tS}, 18")
    A(f"s_lshl_b32 s{tTMP+1}, s{sT}, 13")
    A(f"s_add_u32 s{tTMP}, s{tTMP}, s{tTMP+1}")
    A(f"s_lshr_b32 s{tTMP+1}, s{tTMP}, 7")
    add64(A, tREC, sWS, f"s{tTMP+1}")
    A(f"s_add_u32 s{tTMP+1}, s{tTMP}, {KF + 4096}")
    add64(A, tK, sWS, f"s{tTMP+1}")
    add64(A, tV, tK, VF - KF)
    add64(A, tKM, tK, KMV - KF)
    A(f"s_lshl_b32 s{tTMP+2}, s{tQT}, 10")
    A(f"s_add_u32 s{tTMP+2}, s{tTMP+2}, {QF - KF}")
    add64(A, tQ, tK, f"s{tTMP+2}")
    A(f"global_load_dword v6, v4, s[{tREC}:{tREC+1}] sc1")
    A("s_waitcnt vmcnt(0)")
    A(f"global_store_dword v2, v3, s[{tFP}:{tFP+1}] sc1")
    A("v_cmp_eq_u32 vcc, 0, v6")
    A("s_cbranch_vccz L_T_a")
    wait_word(A, 4, tREC, 6, 1, sleep=2)
    A("L_T_a:")
    for j in range(4):
        A(f"global_load_dwordx4 {vr(Qr+4*j,4)}, v{L16}, s[{tQ}:{tQ+1}] offset:{j*2048-4096} sc1")
    for j in range(8):
        A(f"global_load_dwordx4 {vr(Kr+4*j,4)}, v{L16}, s[{tK}:{tK+1}] offset:{j*1024-4096} sc1")
    for j in range(8):
        A(f"global_load_dwordx4 {vr(Vr+4*j,4)}, v{L16}, s[{tV}:{tV+1}] offset:{j*1024-4096} sc1")
    A(f"s_lshl_b32 s{tTMP}, s{tS}, 1")
    A(f"s_add_u32 s{tTMP}, s{tTMP}, s{tQT}")
    A(f"s_lshl_b32 s{tTMP+1}, s{tTMP}, 5")
    A(f"s_add_u32 s{tTMP+1}, s{tTMP+1}, s{sT}")
    A(f"s_lshl_b32 s{tTMP+2}, s{tTMP+1}, 12")
    A(f"s_add_u32 s{tTMP+2}, s{tTMP+2}, {OF}")
    add64(A, tO, sWS, f"s{tTMP+2}")
    A(f"s_lshl_b32 s{tTMP+2}, s{tTMP+1}, 2")
    A(f"s_add_u32 s{tTMP+2}, s{tTMP+2}, {FL_OT}")
    add64(A, tFP, sWS, f"s{tTMP+2}")
    A("s_waitcnt vmcnt(8)")
    for j in range(4):
        for kt in range(2):
            A(MF32(X + 4 * kt, vr(Kr + 8 * j + 4 * kt, 4), vr(Qr + 4 * j, 4), "0" if j == 0 else vr(X + 4 * kt, 4)))
    wait_word(A, 5, tREC, 6, 1, off=32, sleep=1)
    for j in range(4):
        A(f"global_load_dwordx4 {vr(KMr+4*j,4)}, v{L16}, s[{tKM}:{tKM+1}] offset:{j*2048-4096} sc1")
    for j in range(4):
        A(f"global_load_dwordx2 {vr(VMr+2*j,2)}, v{L16}, s[{tKM}:{tKM+1}] offset:{j*2048-3072} sc1")
    for j in range(8):
        A(f"v_cndmask_b32 v{X+j}, v12, v{X+j}, s[{tM+2*j}:{tM+2*j+1}]")
    A(f"v_max3_f32 v{T}, v{X}, v{X+1}, v{X+2}")
    A(f"v_max3_f32 v{T+1}, v{X+3}, v{X+4}, v{X+5}")
    A(f"v_max3_f32 v{T}, v{T}, v{X+6}, v{X+7}")
    A(f"v_max_f32 v{T}, v{T}, v{T+1}")
    for j in range(4):
        A(f"s_waitcnt vmcnt({7-j})")
        A(MF32(SMr, vr(KMr + 4 * j, 4), vr(Qr + 4 * j, 4), "0" if j == 0 else vr(SMr, 4)))
    A(f"v_max3_f32 v{T}, v{T}, v{SMr}, v{SMr+1}")
    A(f"v_mov_b32 v{T+1}, v{T}")
    A(f"v_permlane32_swap_b32 v{T}, v{T+1}")
    A(f"v_max_f32 v{T}, v{T}, v{T+1}")
    A(f"v_mov_b32 v{T+1}, v{T}")
    A(f"v_permlane16_swap_b32 v{T}, v{T+1}")
    A(f"v_max_f32 v{T}, v{T}, v{T+1}")
    A(f"v_mul_f32 v{T}, {hex(fbits(-CEXP))}, v{T}")
    A(f"s_mov_b32 s{tTMP}, {hex(fbits(CEXP))}")
    ev = [X + j for j in range(8)] + [SMr, SMr + 1]
    for r in ev: A(f"v_fma_f32 v{r}, v{r}, s{tTMP}, v{T}")
    for r in ev: A(f"v_exp_f32 v{r}, v{r}")
    for j in range(4): A(f"v_cvt_pk_bf16_f32 v{X+j}, v{X+2*j}, v{X+2*j+1}")
    A(f"v_cvt_pk_bf16_f32 v{PM}, v{SMr}, v{SMr+1}")
    A(f"v_mov_b32 v{PM+1}, 0")
    A(f"v_mov_b32 v{PM+2}, 0")
    A(f"v_mov_b32 v{PM+3}, v{PM}")
    A(MF32(LX, vr(8, 4), vr(X, 4), "0"))
    A(MF16(LM, vr(8, 2), vr(PM, 2), "0"))
    for j in range(8): A(MF32(OA + 4 * j, vr(Vr + 4 * j, 4), vr(X, 4), "0"))
    A("s_waitcnt vmcnt(0)")
    A(f"v_add_f32 v{T}, v{LX}, v{LM}")
    A(f"v_rcp_f32 v{T}, v{T}")
    for j in range(8): A(MF16(OA + 4 * j, vr(VMr + 2 * (j >> 1), 2), vr(PM + 2 * (j & 1), 2), vr(OA + 4 * j, 4)))
    for kk in range(4):
        for i in range(8): A(f"v_mul_f32 v{OA+8*kk+i}, v{OA+8*kk+i}, v{T}")
        for p in range(4): A(f"v_cvt_pk_bf16_f32 v{OA+8*kk+p}, v{OA+8*kk+2*p}, v{OA+8*kk+2*p+1}")
        A(f"global_store_dwordx4 v{L16}, {vr(OA+8*kk,4)}, s[{tO}:{tO+1}] offset:{kk*1024} sc1")
    A(f"s_add_u32 s{tS}, s{tS}, {NT}")
    A(f"s_cmp_lt_u32 s{tS}, 64")
    A("s_cbranch_scc1 L_T_loop")
    A("s_waitcnt vmcnt(0)")
    A(f"global_store_dword v2, v3, s[{tFP}:{tFP+1}] sc1")
    A("s_endpgm")

def do_ln(A, cfg, sidx):
    for j in range(4): A(f"v_mov_b32 v{8+j}, 0")
    A(f"s_lshl_b32 s8, s{sidx}, 12")
    A(f"s_lshl_b32 s9, s{sW}, 10")
    A("s_add_u32 s8, s8, s9")
    A("v_lshl_add_u32 v4, v0, 4, s8")
    A("v_and_b32 v5, 7, v0")
    A("v_lshrrev_b32 v6, 3, v0")
    A(f"s_lshl_b32 s8, s{sidx}, 15")
    A(f"s_lshl_b32 s9, s{sW}, 13")
    A("s_add_u32 s8, s8, s9")
    A("v_lshlrev_b32 v7, 10, v5")
    A("v_lshl_add_u32 v7, v6, 4, v7")
    A("v_add_u32 v7, s8, v7")
    XR, XF = 16, 64
    for i in range(8):
        A(f"global_load_dwordx4 {vr(XR+4*i,4)}, v7, s[{sX}:{sX+1}] offset:{i*128}")
    A(f"global_store_dwordx4 v4, v[8:11], s[{sWS}:{sWS+1}] sc1")
    A("v_and_b32 v12, 1, v6")
    A("v_lshlrev_b32 v12, 11, v12")
    A("v_lshrrev_b32 v13, 1, v6")
    A("v_lshl_add_u32 v12, v13, 8, v12")
    A("v_lshl_add_u32 v12, v5, 4, v12")
    A(f"s_lshl_b32 s8, s{sidx}, 15")
    A(f"s_lshr_b32 s9, s{sW}, 1")
    A("s_lshl_b32 s9, s9, 10")
    A("s_add_u32 s8, s8, s9")
    A(f"s_and_b32 s9, s{sW}, 1")
    A("s_lshl_b32 s9, s9, 7")
    A("s_add_u32 s8, s8, s9")
    A(f"s_add_u32 s8, s8, {XNF}")
    A("v_add_u32 v12, s8, v12")
    A("s_mov_b32 s9, 0xffff0000")
    def allred(r):
        A(f"v_add_f32_dpp v{r}, v{r}, v{r} row_ror:8 row_mask:0xf bank_mask:0xf")
        A(f"v_mov_b32 v13, v{r}")
        A(f"v_permlane16_swap_b32 v{r}, v13")
        A(f"v_add_f32 v{r}, v{r}, v13")
        A(f"v_mov_b32 v13, v{r}")
        A(f"v_permlane32_swap_b32 v{r}, v13")
        A(f"v_add_f32 v{r}, v{r}, v13")
    def rnd(r):
        A(f"v_cvt_pk_bf16_f32 v{r}, v{r}, v{r}")
        A(f"v_and_b32 v{r}, s9, v{r}")
    A("s_waitcnt vmcnt(1)")
    for i in range(32):
        A(f"v_lshlrev_b32 v{XF+2*i}, 16, v{XR+i}")
        A(f"v_and_b32 v{XF+2*i+1}, s9, v{XR+i}")
    A(f"v_add_f32 v14, v{XF}, v{XF+1}")
    A(f"v_add_f32 v15, v{XF+2}, v{XF+3}")
    for i in range(4, 64, 2):
        A(f"v_add_f32 v14, v14, v{XF+i}")
        A(f"v_add_f32 v15, v15, v{XF+i+1}")
    A("v_add_f32 v14, v14, v15")
    allred(14)
    A(f"v_mul_f32 v14, {hex(fbits(1/512))}, v14")
    A("v_mov_b32 v15, 0")
    A("v_mov_b32 v9, 0")
    for i in range(0, 64, 2):
        A(f"v_sub_f32 v10, v{XF+i}, v14")
        A(f"v_sub_f32 v11, v{XF+i+1}, v14")
        A("v_fmac_f32 v15, v10, v10")
        A("v_fmac_f32 v9, v11, v11")
    A("v_add_f32 v15, v15, v9")
    allred(15)
    A(f"v_mul_f32 v15, {hex(fbits(1/512))}, v15")
    rnd(14); rnd(15)
    A(f"v_add_f32 v15, {hex(fbits(1e-5))}, v15")
    rnd(15)
    A("v_sqrt_f32 v15, v15")
    rnd(15)
    A("v_rcp_f32 v9, v15")
    A("v_fma_f32 v10, -v15, v9, 2.0")
    A("v_mul_f32 v9, v9, v10")
    for i in range(32):
        a, b = XF + 2 * i, XF + 2 * i + 1
        A(f"v_sub_f32 v{a}, v{a}, v14")
        A(f"v_sub_f32 v{b}, v{b}, v14")
        A(f"v_cvt_pk_bf16_f32 v{b}, v{a}, v{b}")
        A(f"v_lshlrev_b32 v{a}, 16, v{b}")
        A(f"v_and_b32 v{b}, s9, v{b}")
        A(f"v_mul_f32 v{a}, v{a}, v9")
        A(f"v_mul_f32 v{b}, v{b}, v9")
        A(f"v_cvt_pk_bf16_f32 v{XR+i}, v{a}, v{b}")
        if i % 4 == 3:
            A(f"global_store_dwordx4 v12, {vr(XR+i-3,4)}, s[{sWS}:{sWS+1}] sc1")
            A("v_add_u32 v12, 4096, v12")
    A("s_waitcnt vmcnt(0)")
    A("s_barrier")
    A(f"s_cmp_lg_u32 s{sW}, 0")
    A("s_cbranch_scc1 L_ln_done")
    A("v_mov_b32 v4, 0")
    A("v_mov_b32 v5, 1")
    A("s_mov_b64 exec, 1")
    A(f"global_atomic_add v4, v5, s[{sDBG}:{sDBG+1}] offset:{D_INIT*4} sc1")
    A("s_mov_b64 exec, -1")
    A("s_waitcnt vmcnt(0)")
    A("L_ln_done:")

def role_O(A, cfg):
    A("L_role_O:")
    oI, oN, oU, oB, oH, oO, oFH, oFO, oXO = 44, 45, 46, 48, 50, 52, 54, 56, 58
    oTMP = 62; oLB = 68
    L16 = 1
    A(f"s_sub_u32 s{oI}, s{sVID}, {256 - 16*NG}")
    if not cfg.get("noinit"):
        A(f"s_cmp_ge_u32 s{oI}, 64")
        A("s_cbranch_scc1 L_ln_done")
        do_ln(A, cfg, oI)
    A(f"s_and_b32 s{oN}, s{oI}, 15")
    A(f"s_lshr_b32 s{oU}, s{oI}, 4")
    A(f"v_lshlrev_b32 v{L16}, 4, v0")
    A("v_lshrrev_b32 v4, 2, v0")
    A("v_bfe_u32 v5, v0, 4, 1")
    A("v_lshlrev_b32 v5, 1, v5")
    A("v_and_b32 v6, 3, v0")
    A("v_xor_b32 v6, v6, v5")
    A("v_lshlrev_b32 v4, 10, v4")
    A("v_lshl_add_u32 v4, v6, 4, v4")
    A(f"s_lshl_b32 s8, s{oN}, 6")
    A("v_add_u32 v4, s8, v4")
    A("v_add_u32 v5, 0x4000, v4")
    A("v_lshrrev_b32 v6, 2, v0")
    A("v_lshlrev_b32 v6, 6, v6")
    A("v_bfe_u32 v7, v0, 4, 1")
    A("v_lshl_add_u32 v6, v7, 5, v6")
    A("v_and_b32 v7, 3, v0")
    A("v_lshl_add_u32 v6, v7, 3, v6")
    A(f"s_lshl_b32 s{oLB}, s{sW}, 15")
    A(f"v_add_u32 v6, s{oLB}, v6")
    A("v_xor_b32 v7, 32, v6")
    A(f"s_mul_i32 s10, s{sW}, {448*1024}")
    A(f"s_lshl_b32 s11, s{sW}, 20")
    def wreg(idx, tt, n=4, o=0):
        x = (idx * 2 + tt) * 4 + o
        return ar(x, n) if x < 256 else vr(144 + x - 256, n)
    vm = VM(A)
    def issue(idx):
        if idx < 14:
            A(f"s_add_u32 s{oTMP+2}, s10, {idx*32768}"); add64(A, oTMP, sWD, f"s{oTMP+2}")
        else:
            A(f"s_add_u32 s{oTMP+2}, s11, {(idx-14)*32768}"); add64(A, oTMP, sWO, f"s{oTMP+2}")
        A(f"s_add_u32 m0, s{oLB}, {(idx & 15)*2048}")
        vm.issue(f"global_load_lds_dwordx4 v4, s[{oTMP}:{oTMP+1}]", idx)
        A(f"s_add_u32 m0, s{oLB}, {(idx & 15)*2048 + 1024}")
        vm.issue(f"global_load_lds_dwordx4 v5, s[{oTMP}:{oTMP+1}]", idx)
    for idx in range(16): issue(idx)
    for idx in range(46):
        vm.wait(idx)
        for tt in range(2):
            for u in range(2):
                A(f"ds_read_b64_tr_b16 {wreg(idx, tt, 2, 2*u)}, v{6+tt} offset:{(idx & 15)*2048 + u*1024}")
        A("s_waitcnt lgkmcnt(0)")
        if idx + 16 < 46: issue(idx + 16)
    A("v_mov_b32 v2, 0")
    if not cfg.get("noinit"):
        wait_word(A, 2, sDBG, 3, 64, off=D_INIT * 4)
    A("v_min_u32 v4, 13, v0")
    A("v_lshlrev_b32 v4, 2, v4")
    A("v_and_b32 v5, 7, v0")
    A("v_lshlrev_b32 v5, 2, v5")
    A("v_lshrrev_b32 v6, 4, v0")
    A("v_mul_u32_u24 v6, 288, v6")
    A("v_and_b32 v7, 15, v0")
    A("v_lshl_add_u32 v6, v7, 4, v6")
    A(f"s_mul_i32 s8, s{sW}, 4608")
    A("v_add_u32 v6, s8, v6")
    A("v_lshrrev_b32 v8, 1, v7")
    A("v_mul_u32_u24 v8, 288, v8")
    A("v_and_b32 v9, 1, v0")
    A("v_lshl_add_u32 v8, v9, 3, v8")
    A("v_lshrrev_b32 v9, 4, v0")
    A(f"s_lshl_b32 s8, s{sW}, 2")
    A("v_add_u32 v9, s8, v9")
    A("v_lshl_add_u32 v8, v9, 4, v8")
    A("v_lshlrev_b32 v9, 10, v9")
    A("v_lshl_add_u32 v9, v7, 2, v9")
    A(f"s_lshl_b32 s8, s{oN}, 6")
    A("v_add_u32 v9, s8, v9")
    A("v_mov_b32 v7, v8")
    A("s_barrier")
    AB, AA, ST = 16, 24, 32
    st = lambda i: vr(ST + 4 * (i % 28), 4)
    mark(A, cfg)
    A("L_O_loop:")
    A(f"s_lshr_b32 s{oTMP}, s{oU}, 1")
    A(f"s_lshl_b32 s{oTMP}, s{oTMP}, 8")
    A(f"s_mul_i32 s{oTMP+1}, s{sW}, 56")
    A(f"s_add_u32 s{oTMP}, s{oTMP}, s{oTMP+1}")
    A(f"s_add_u32 s{oTMP}, s{oTMP}, {FL_H}")
    add64(A, oFH, sWS, f"s{oTMP}")
    A(f"s_lshl_b32 s{oTMP}, s{oU}, 7")
    A(f"s_lshl_b32 s{oTMP+1}, s{sW}, 5")
    A(f"s_add_u32 s{oTMP}, s{oTMP}, s{oTMP+1}")
    A(f"s_lshl_b32 s{oTMP+1}, s{oTMP}, 10")
    A(f"s_add_u32 s{oTMP}, s{oTMP}, {FL_OT}")
    add64(A, oFO, sWS, f"s{oTMP}")
    A(f"s_add_u32 s{oTMP+1}, s{oTMP+1}, {OF + 4096}")
    add64(A, oO, sWS, f"s{oTMP+1}")
    A(f"s_mul_i32 s{oTMP}, s{oU}, {56*1024}")
    A(f"s_mul_i32 s{oTMP+1}, s{sW}, {14*1024}")
    A(f"s_add_u32 s{oTMP}, s{oTMP}, s{oTMP+1}")
    A(f"s_add_u32 s{oTMP}, s{oTMP}, {HF + 4096}")
    add64(A, oH, sWS, f"s{oTMP}")
    A(f"s_lshl_b32 s{oTMP}, s{oU}, 14")
    add64(A, oXO, sX, f"s{oTMP}")
    wait_word(A, 4, oFH, 3, 1, sleep=2)
    vm = VM(A)
    vm.issue(f"global_load_dword v10, v9, s[{oXO}:{oXO+1}]", "x")
    def ld(i):
        if i < 14:
            if i == 8: add64(A, oH, oH, 8192)
            vm.issue(f"global_load_dwordx4 {st(i)}, v{L16}, s[{oH}:{oH+1}] offset:{(i & 7)*1024-4096} sc1", i)
        else:
            k = i - 14
            if k and k % 8 == 0: add64(A, oO, oO, 8192)
            vm.issue(f"global_load_dwordx4 {st(i)}, v{L16}, s[{oO}:{oO+1}] offset:{(k & 7)*1024-4096} sc1", i)
    def mm(i):
        acc = AB if i < 14 else AA
        first = i in (0, 14)
        for tt in range(2):
            A(MF32(acc + 4 * tt, wreg(i, tt), st(i), "0" if first else vr(acc + 4 * tt, 4)))
    for i in range(14): ld(i)
    add64(A, oXO, sOUT, f"s{oTMP}")
    wait_word(A, 5, oFO, 3, 1, sleep=1)
    vm.q = []
    for i in range(14, 28): ld(i)
    for i in range(46):
        if i >= 14: vm.wait(i)
        mm(i)
        if i + 28 < 46: ld(i + 28)
    for p, acc in enumerate((AB, AA)):
        for tt in range(2):
            A(f"ds_write_b128 v6, {vr(acc+4*tt,4)} offset:{p*2304 + tt*1152}")
    A("s_waitcnt lgkmcnt(0)")
    A("s_barrier")
    for p in range(2):
        for ww in range(4):
            A(f"ds_read_b64 {vr(ST+(p*4+ww)*2,2)}, v7 offset:{ww*4608 + p*2304}")
    A("v_xor_b32 v6, 0x8000, v6")
    A("v_xor_b32 v7, 0x8000, v7")
    A("s_mov_b32 s9, 0xffff0000")
    A("v_lshlrev_b32 v11, 16, v10")
    A("v_and_b32 v12, s9, v10")
    A("s_waitcnt lgkmcnt(0)")
    for p in range(2):
        b = ST + 8 * p
        for e in range(2):
            A(f"v_add_f32 v{b+e}, v{b+e}, v{b+2+e}")
            A(f"v_add_f32 v{b+4+e}, v{b+4+e}, v{b+6+e}")
        for e in range(2): A(f"v_add_f32 v{b+e}, v{b+e}, v{b+4+e}")
        A(f"v_cvt_pk_bf16_f32 v{b+2}, v{b}, v{b+1}")
        A(f"v_lshlrev_b32 v{b}, 16, v{b+2}")
        A(f"v_and_b32 v{b+1}, s9, v{b+2}")
    A(f"v_add_f32 v11, v11, v{ST+8}")
    A(f"v_add_f32 v12, v12, v{ST+9}")
    A("v_cvt_pk_bf16_f32 v12, v11, v12")
    A("v_lshlrev_b32 v11, 16, v12")
    A("v_and_b32 v12, s9, v12")
    A(f"v_add_f32 v11, v11, v{ST}")
    A(f"v_add_f32 v12, v12, v{ST+1}")
    A("v_cvt_pk_bf16_f32 v11, v11, v12")
    A(f"global_store_dword v9, v11, s[{oXO}:{oXO+1}]")
    A(f"s_add_u32 s{oU}, s{oU}, {NG}")
    A(f"s_cmp_lt_u32 s{oU}, 128")
    A("s_cbranch_scc1 L_O_loop")
    A("s_endpgm")

HEADER = """; generated by gen.py (hand-written generator); persistent role-specialised kernel
; @launch grid=(256,1,1) block=(256,1,1) lds=163840
.amdgcn_target "amdgcn-amd-amdhsa--gfx950"
.text
.globl {n}_kernel
.p2align 8
.type {n}_kernel,@function
{n}_kernel:
"""
FOOTER = """.section .rodata,"a"
.p2align 6
.amdhsa_kernel {n}_kernel
  .amdhsa_next_free_vgpr 512
  .amdhsa_next_free_sgpr 102
  .amdhsa_accum_offset 256
  .amdhsa_group_segment_fixed_size 0
  .amdhsa_kernarg_size 112
  .amdhsa_user_sgpr_count 2
  .amdhsa_user_sgpr_kernarg_segment_ptr 1
  .amdhsa_system_sgpr_workgroup_id_x 1
.end_amdhsa_kernel
"""
ROLES = {"R": role_R, "KV": role_KV, "QG": role_QG, "T": role_T, "O": role_O}
def build(cfg):
    A = Asm()
    entry(A, cfg)
    A("L_end:")
    A("s_endpgm")
    for r in ("T", "O", "KV", "QG", "R"):
        if r in cfg["roles"]: ROLES[r](A, cfg)
    if cfg.get("tl"):
        out = []
        for c in A.ins:
            if getattr(c, "mn", "") == "s_endpgm" and out and out[-1].label != "L_end":
                for t in ["s_mov_b64 exec, 1", "s_memrealtime s[8:9]", f"s_lshl_b32 s10, s{sVID}, 6", f"s_lshl_b32 s11, s{sW}, 4", "s_add_u32 s10, s10, s11",
                          f"s_add_u32 s10, s10, {DBGW + 0x4000}", "v_mov_b32 v2, s10", "v_mov_b32 v4, s100", "v_mov_b32 v6, s101", "s_waitcnt lgkmcnt(0)", "v_mov_b32 v5, s8",
                          f"global_store_dwordx3 v2, v[4:6], s[{sWS}:{sWS+1}]"]:
                    out.append(Ins(t))
            out.append(c)
            if c.label and c.label.endswith("_loop") or c.label in ("L_R0","L_R1","L_R2","L_R3"):
                pass
        A.ins = out
    n = A.fix()
    return HEADER.format(n=NAME) + A.text() + FOOTER.format(n=NAME)

if __name__ == "__main__":
    import json
    cfg = json.loads(sys.argv[2]) if len(sys.argv) > 2 else {"roles": ["R", "KV", "QG", "T", "O"]}
    open(sys.argv[1], "w").write(build(cfg))
```
